```python
import torch

def _softmax(x, axis=-1):
    return torch.softmax(x, dim=axis)
def _gelu(x):
    return torch.nn.functional.gelu(x, approximate="tanh")
def _silu(x):
    return torch.nn.functional.silu(x)
def _sigmoid(x):
    return torch.sigmoid(x)
def _layernorm(x, axis=-1, eps=1e-5):
    m = x.mean(dim=axis, keepdim=True)
    v = x.var(dim=axis, keepdim=True, unbiased=False)
    return (x - m) / torch.sqrt(v + eps)
def _scatter_add(tgt, idx, src, axis=0):
    return tgt.clone().index_add_(axis, idx, src)
def _segment_sum(src, seg, n):
    out = torch.zeros((n,) + src.shape[1:], dtype=src.dtype)
    return out.index_add_(0, seg, src)
def _pad(x, pw):
    flat = tuple(v for pair in reversed(pw) for v in pair)
    return torch.nn.functional.pad(x, flat)

kernel_name = 'parallel_sum__ssm_conv_s4__glu_gated_geglu__prompt'

def setup_inputs():

    _w = (lambda a: (lambda t: t.to(torch.bfloat16) if t.is_floating_point() else t)(torch.as_tensor(a)))
    def _A_setup():
        B, L, D, N = 1, 2048, 448, 256
        A_re = -(lambda _x: torch.exp(torch.as_tensor(_x)))((lambda *s: torch.randn(*s, dtype=torch.bfloat16) * 6.4)(D, N))
        A_im = torch.pi * (lambda *s: torch.randn(*s, dtype=torch.bfloat16) * 0.05)(D, N)
        B_re = (lambda *s: torch.randn(*s, dtype=torch.bfloat16) * 0.1)(D, N)
        B_im = (lambda *s: torch.randn(*s, dtype=torch.bfloat16) * 0.1)(D, N)
        C_re = (lambda *s: torch.randn(*s, dtype=torch.bfloat16) * 0.1)(D, N)
        C_im = (lambda *s: torch.randn(*s, dtype=torch.bfloat16) * 0.1)(D, N)
        log_dt = (lambda *s: torch.randn(*s, dtype=torch.bfloat16) * 0.05)(D) * 0.5 - 4.0
        Dskip = (lambda *s: torch.randn(*s, dtype=torch.bfloat16) * 0.05)(D)
        return {
            "u": _w((lambda *s: torch.randn(*s, dtype=torch.bfloat16) * 0.05)(B, L, D)),
            "A_re": _w(A_re),
            "A_im": _w(A_im),
            "B_re": _w(B_re),
            "B_im": _w(B_im),
            "C_re": _w(C_re),
            "C_im": _w(C_im),
            "log_dt": _w(log_dt),
            "Dskip": _w(Dskip),
        }
    _A_in = _A_setup()

    def _B_setup():
        B, S, Dm, Df = 1, 2048, 448, 1792
        return {
            "x": _w((lambda *s: torch.randn(*s, dtype=torch.bfloat16) * 0.05)(B, S, Dm)),
            "w_gate": _w((lambda *s: torch.randn(*s, dtype=torch.bfloat16) * 0.4)(Dm, Df) * (Dm ** -0.5)),
            "w_up": _w((lambda *s: torch.randn(*s, dtype=torch.bfloat16) * 0.4)(Dm, Df) * (Dm ** -0.5)),
            "w_down": _w((lambda *s: torch.randn(*s, dtype=torch.bfloat16) * 0.4)(Df, Dm) * (Df ** -0.5)),
        }
    _B_in = _B_setup()

    return {
        "A_u": _A_in["u"],
        "A_A_re": _A_in["A_re"],
        "A_A_im": _A_in["A_im"],
        "A_B_re": _A_in["B_re"],
        "A_B_im": _A_in["B_im"],
        "A_C_re": _A_in["C_re"],
        "A_C_im": _A_in["C_im"],
        "A_log_dt": _A_in["log_dt"],
        "A_Dskip": _A_in["Dskip"],
        "B_x": _B_in["x"],
        "B_w_gate": _B_in["w_gate"],
        "B_w_up": _B_in["w_up"],
        "B_w_down": _B_in["w_down"],
    }

def reference(A_u, A_A_re, A_A_im, A_B_re, A_B_im, A_C_re, A_C_im, A_log_dt, A_Dskip, B_x, B_w_gate, B_w_up, B_w_down):
    def _A_ref(u, A_re, A_im, B_re, B_im, C_re, C_im, log_dt, Dskip):
        Bsz, L, D = u.shape
        dt = torch.exp(log_dt)[:, None]
        A = A_re + 1j * A_im
        Bc = B_re + 1j * B_im
        Cc = C_re + 1j * C_im
        logdA = dt * A
        dB = dt * Bc
        l = (lambda x, dt: x.to(dt))(torch.arange(L), A_re.dtype)
        P = torch.exp(logdA[:, :, None] * l[None, None, :])
        K = torch.einsum("dn,dnl,dn->dl", Cc, P, dB).real
        L2 = 2 * L
        Kp = _pad(K, ((0, 0), (0, L)))
        up = (lambda x, *d: x.permute(*d))(u, 0, 2, 1)
        up = _pad(up, ((0, 0), (0, 0), (0, L)))
        Kf = (lambda x, axes=(-2,-1): torch.fft.rfft2(x.float(), dim=axes))(Kp[:, None, :], axes=(-2, -1))
        Uf = (lambda x, axes=(-2,-1): torch.fft.rfft2(x.float(), dim=axes))(up[:, :, None, :], axes=(-2, -1))
        Yf = Uf * Kf[None, :, :, :]
        y = (lambda x, s, axes=(-2,-1): torch.fft.irfft2(x, s=s, dim=axes).to(torch.bfloat16))(Yf, (1, L2), axes=(-2, -1))[:, :, 0, :L]
        y = (lambda x, *d: x.permute(*d))(y, 0, 2, 1) + u * Dskip[None, None, :]
        return y

    def _B_ref(x, w_gate, w_up, w_down):
        g = torch.einsum("bsd,df->bsf", x, w_gate)
        u = torch.einsum("bsd,df->bsf", x, w_up)
        h = _gelu(g) * u
        return torch.einsum("bsf,fd->bsd", h, w_down)

    x = A_u
    xn = _layernorm(x, axis=-1)
    return x + _A_ref(xn, A_A_re, A_A_im, A_B_re, A_B_im, A_C_re, A_C_im, A_log_dt, A_Dskip) + _B_ref(xn, B_w_gate, B_w_up, B_w_down)
```

```python
class Asm:
    def __init__(self):
        self.L = []
        self._lab = 0
    def e(self, s):
        for line in s.strip("\n").split("\n"):
            line = line.strip()
            if line:
                self.L.append("    " + line)
    def label(self, name):
        self.L.append(name + ":")
    def newlabel(self, pfx="L"):
        self._lab += 1
        return f"{pfx}_{self._lab}"
    def nop(self, n):
        while n > 0:
            k = min(n, 16)
            self.e(f"s_nop {k-1}")
            n -= k
    def stamp(self, i):
        if not getattr(self, "prof", False): return
        self.e(f"s_memtime s[{64+2*i}:{65+2*i}]")
        self.nstamps = max(getattr(self, "nstamps", 0), i+1)
    def dump_stamps(self, wg, wave_sgpr="s3", wave=0, slot=0):
        if not getattr(self, "prof", False): return
        lab = self.newlabel("prof")
        self.e(f"s_waitcnt lgkmcnt(0) vmcnt(0)")
        self.e(f"s_cmp_lg_u32 s2, {wg}")
        self.e(f"s_cbranch_scc1 {lab}")
        self.e(f"s_cmp_lg_u32 {wave_sgpr}, {wave}")
        self.e(f"s_cbranch_scc1 {lab}")
        self.e("s_load_dwordx2 s[60:61], s[0:1], 112")
        self.e("s_waitcnt lgkmcnt(0)")
        self.e("s_mov_b32 s62, 256")
        self.e("s_mov_b32 s63, 0x00020000")
        self.e(f"v_mov_b32 v0, {slot*64}")
        for i in range(self.nstamps):
            self.e(f"s_sub_u32 s{64+2*i}, s{64+2*i}, s64" if i else "s_nop 0")
        for i in range(1, self.nstamps):
            self.e(f"v_mov_b32 v1, s{64+2*i}")
            self.e(f"buffer_store_dword v1, v0, s[60:63], 0 offen offset:{4*i}")
        self.label(lab)
    def text(self):
        return "\n".join(self.L) + "\n"
    def srd(self, d, base, nbytes, off=0):
        if off:
            self.e(f"s_add_u32 s{d}, s{base}, {off}")
            self.e(f"s_addc_u32 s{d+1}, s{base+1}, 0")
        else:
            self.e(f"s_mov_b32 s{d}, s{base}")
            self.e(f"s_mov_b32 s{d+1}, s{base+1}")
        self.e(f"s_mov_b32 s{d+2}, {nbytes}")
        self.e(f"s_mov_b32 s{d+3}, 0x00020000")

def vr(a, n=1):
    return f"v{a}" if n == 1 else f"v[{a}:{a+n-1}]"
def sr(a, n=1):
    return f"s{a}" if n == 1 else f"s[{a}:{a+n-1}]"

def kernel_desc(name, vgpr, sgpr=96, accum=None):
    if accum is None:
        accum = (vgpr + 3) // 4 * 4
    return f""".p2align 6
.amdhsa_kernel {name}
  .amdhsa_next_free_vgpr {vgpr}
  .amdhsa_next_free_sgpr {sgpr}
  .amdhsa_accum_offset {accum}
  .amdhsa_group_segment_fixed_size 0
  .amdhsa_kernarg_size 128
  .amdhsa_user_sgpr_count 2
  .amdhsa_user_sgpr_kernarg_segment_ptr 1
  .amdhsa_system_sgpr_workgroup_id_x 1
.end_amdhsa_kernel
"""

def f2u(x):
    import struct
    return struct.unpack("<I", struct.pack("<f", x))[0]
def fhex(x):
    return "0x%08x" % f2u(x)
```

```python
from asmlib import *
import math

WS_H  = 0
WS_UT = 8 << 20
WS_K  = 10 << 20
WS_KS = 12 << 20
WS_YT = 13 << 20
WS_WD = 16 << 20

def token_perm(a, dst, n, t0, t1):
    a.e(f"""
    v_bfe_u32 v{t0}, v{n}, 3, 1
    v_lshlrev_b32 v{dst}, 4, v{t0}
    v_bfe_u32 v{t0}, v{n}, 1, 1
    v_lshl_or_b32 v{dst}, v{t0}, 3, v{dst}
    v_and_b32 v{t0}, 1, v{n}
    v_lshl_or_b32 v{dst}, v{t0}, 2, v{dst}
    v_bfe_u32 v{t0}, v{n}, 2, 1
    v_lshl_or_b32 v{dst}, v{t0}, 1, v{dst}
    v_bfe_u32 v{t0}, v{n}, 4, 1
    v_or_b32 v{dst}, v{t0}, v{dst}
    """)

def onehot_frag(a, dst, d, t0):
    for i in range(4):
        a.e(f"""
        v_cmp_eq_u32 vcc, {2*i}, v{d}
        v_mov_b32 v{t0}, 0x3f80
        s_nop 0
        v_cndmask_b32 v{dst+i}, 0, v{t0}, vcc
        v_cmp_eq_u32 vcc, {2*i+1}, v{d}
        v_mov_b32 v{t0}, 0x3f800000
        s_nop 0
        v_cndmask_b32 v{t0}, 0, v{t0}, vcc
        v_or_b32 v{dst+i}, v{dst+i}, v{t0}
        """)

def rbf16(a, dst, src, t):
    a.e(f"v_cvt_pk_bf16_f32 v{t}, v{src}, v{src}")
    a.e(f"v_lshlrev_b32 v{dst}, 16, v{t}")

EXACT_ROUND = True
import os
FINE = bool(int(os.environ.get('FINE','0')))
NODOT = bool(int(os.environ.get('NODOT','0')))
NOTR = bool(int(os.environ.get('NOTR','0')))
OUT = os.environ.get('OUT','v1.s')
PROF = bool(int(os.environ.get('PROF','0')))

def gen_g1(a):
    XB, ACC, AF = 16, 128, 192
    vSum, vSq, vS, vTR, vXN = 224, 226, 228, 232, 236
    vM, vR, vMR = 240, 241, 242
    S_OFF = 114688
    a.label("g1_kernel")
    a.e("""
    s_cmp_ge_u32 s2, 224
    s_cbranch_scc1 g1_exit
    s_load_dwordx2 s[4:5], s[0:1], 0
    s_load_dwordx4 s[28:31], s[0:1], 80
    s_load_dwordx2 s[6:7], s[0:1], 120
    """)
    a.stamp(0)
    a.e("""
    v_and_b32 v1, 63, v0
    v_lshrrev_b32 v2, 6, v0
    s_and_b32 s32, s2, 7
    v_readfirstlane_b32 s3, v2
    s_lshr_b32 s33, s2, 3
    s_and_b32 s34, s32, 1
    s_lshl_b32 s34, s34, 2
    s_and_b32 s35, s33, 3
    s_add_u32 s34, s34, s35
    s_lshr_b32 s35, s32, 1
    s_mul_i32 s35, s35, 7
    s_lshr_b32 s36, s33, 2
    s_add_u32 s35, s35, s36
    """)
    a.e("""
    v_lshrrev_b32 v4, 4, v1
    v_and_b32 v5, 15, v1
    v_lshrrev_b32 v6, 1, v5
    v_and_b32 v7, 1, v5
    v_lshl_add_u32 v7, v4, 1, v7
    v_lshlrev_b32 v7, 4, v7
    s_lshl_b32 s36, s35, 7
    v_add_u32 v7, s36, v7
    s_movk_i32 s37, 3584
    v_mul_lo_u32 v2, v6, s37
    v_add_u32 v2, v2, v7
    v_xor_b32 v6, 4, v6
    v_mul_lo_u32 v3, v6, s37
    v_add_u32 v3, v3, v7
    """)
    a.e("v_and_b32 v5, 31, v1")
    token_perm(a, 6, 5, 7, 8)
    a.e("""
    s_lshl_b32 s36, s34, 8
    s_lshl_b32 s38, s3, 5
    s_add_u32 s36, s36, s38
    v_add_u32 v6, s36, v6
    s_movk_i32 s37, 896
    v_mul_lo_u32 v4, v6, s37
    v_lshrrev_b32 v7, 5, v1
    v_lshl_add_u32 v4, v7, 4, v4
    """)
    a.e(f"""
    v_lshrrev_b32 v5, 4, v1
    v_and_b32 v6, 1, v5
    v_lshrrev_b32 v7, 1, v5
    v_lshlrev_b32 v8, 11, v7
    v_lshl_add_u32 v8, v6, 10, v8
    v_bfe_u32 v9, v1, 2, 2
    v_lshl_add_u32 v8, v9, 5, v8
    v_and_b32 v9, 1, v1
    v_lshl_add_u32 v8, v9, 4, v8
    v_bfe_u32 v9, v1, 1, 1
    v_lshl_add_u32 v8, v9, 3, v8
    v_lshl_add_u32 v{vTR}, v6, 7, v8
    v_xor_b32 v6, 1, v6
    v_lshl_add_u32 v{vTR+1}, v6, 7, v8
    v_add_u32 v{vTR+2}, 57344, v{vTR}
    v_add_u32 v{vTR+3}, 57344, v{vTR+1}
    """)
    a.e(f"""
    v_lshlrev_b32 v5, 3, v1
    v_add_u32 v5, {S_OFF}, v5
    v_mov_b32 v6, 0
    v_mov_b32 v7, 0
    ds_write_b64 v5, v[6:7]
    """)
    a.e("s_waitcnt lgkmcnt(0)")
    a.srd(8, 4, 1835008)
    a.srd(12, 28, 1605632)
    a.srd(16, 30, 1605632)
    a.srd(20, 6, 7340032, WS_H)
    a.srd(24, 6, 1835008, WS_UT)
    a.e("""
    s_mul_i32 s40, s3, 28672
    s_lshl_b32 s41, s3, 11
    """)
    for i in range(7):
        for s in range(4*i, 4*i+4):
            a.e(f"buffer_load_dwordx4 {vr(XB+4*s,4)}, v4, s[8:11], 0 offen offset:{32*s}")
        a.e(f"s_add_u32 m0, s41, {i*16384}")
        a.e(f"s_add_u32 s42, s40, {i*229376}")
        a.e(f"buffer_load_dwordx4 v2, s[12:15], s42 offen lds")
        a.e(f"s_add_u32 m0, s41, {i*16384+1024}")
        a.e("s_nop 0")
        a.e(f"buffer_load_dwordx4 v3, s[16:19], s42 offen lds")
    a.e("s_lshl_b32 s42, s35, 5")
    a.e(f"buffer_load_dwordx4 {vr(vXN,4)}, v4, s[8:11], s42 offen")
    NV = 43
    a.e(f"""
    v_mov_b32 v{vSum}, 0
    v_mov_b32 v{vSum+1}, 0
    v_mov_b32 v{vSq}, 0
    v_mov_b32 v{vSq+1}, 0
    v_mov_b32 v{vS}, 0
    v_mov_b32 v{vS+1}, 0
    v_mov_b32 v{vS+2}, 0
    v_mov_b32 v{vS+3}, 0
    s_mov_b32 s43, 0x3f803f80
    """)
    def reads(s, buf):
        if NOTR and s > 1: return
        for t in range(4):
            for j in range(2):
                a.e(f"ds_read_b64_tr_b16 {vr(AF+buf*16+t*4+2*j,2)}, v{vTR+j+(2 if s>=14 else 0)} offset:{(s%14)*4096+t*256}")
    a.stamp(1)
    a.e(f"s_waitcnt vmcnt({NV-6})")
    a.e("s_barrier")
    a.stamp(2)
    reads(0, 0)
    for s in range(28):
        buf = s & 1
        if s + 1 < 28:
            if (s + 1) % 4 == 0:
                a.e(f"s_waitcnt vmcnt({NV-6*((s+1)//4+1)})")
                a.e("s_barrier")
                if not FINE: a.stamp(2+(s+1)//4)
            reads(s + 1, buf ^ 1)
            a.e("s_waitcnt lgkmcnt(8)")
        else:
            a.e("s_waitcnt lgkmcnt(0)")
        for t in range(4):
            c = "0" if s == 0 else vr(ACC+16*t,16)
            a.e(f"v_mfma_f32_32x32x16_bf16 {vr(ACC+16*t,16)}, {vr(AF+buf*16+t*4,4)}, {vr(XB+4*s,4)}, {c}")
            if not NODOT:
                a.e(f"v_dot2_f32_bf16 v{vSum+(t&1)}, v{XB+4*s+t}, s43, v{vSum+(t&1)}")
                a.e(f"v_dot2_f32_bf16 v{vSq+(t&1)}, v{XB+4*s+t}, v{XB+4*s+t}, v{vSq+(t&1)}")
        lab = a.newlabel("g1_cs")
        a.e(f"s_cmp_lg_u32 s3, {s%8}")
        a.e(f"s_cbranch_scc1 {lab}")
        for i in range(4):
            for t in range(4):
                a.e(f"v_dot2_f32_bf16 v{vS+t}, v{AF+buf*16+t*4+i}, s43, v{vS+t}")
        a.label(lab)
    a.stamp(9)
    a.e(f"""
    v_and_b32 v5, 31, v1
    v_lshlrev_b32 v5, 2, v5
    v_add_u32 v5, {S_OFF}, v5
    s_nop 2
    """)
    for t in range(4):
        a.e(f"ds_add_f32 v5, v{vS+t} offset:{t*128}")
    if FINE: a.stamp(3)
    a.e(f"""
    v_add_f32 v{vSum}, v{vSum}, v{vSum+1}
    v_add_f32 v{vSq}, v{vSq}, v{vSq+1}
    v_mov_b32 v{vSum+1}, v{vSum}
    v_mov_b32 v{vSq+1}, v{vSq}
    s_nop 1
    v_permlane32_swap_b32 v{vSum}, v{vSum+1}
    v_permlane32_swap_b32 v{vSq}, v{vSq+1}
    s_nop 1
    v_add_f32 v{vSum}, v{vSum}, v{vSum+1}
    v_add_f32 v{vSq}, v{vSq}, v{vSq+1}
    v_mul_f32 v{vSum}, {fhex(1.0/448)}, v{vSum}
    v_mul_f32 v{vSq}, {fhex(1.0/448)}, v{vSq}
    v_fma_f32 v{vSq}, -v{vSum}, v{vSum}, v{vSq}
    v_max_f32 v{vSq}, 0, v{vSq}
    """)
    rbf16(a, vM, vSum, 5)
    rbf16(a, vSq, vSq, 5)
    a.e(f"v_add_f32 v{vSq}, {fhex(1e-5)}, v{vSq}")
    rbf16(a, vSq, vSq, 5)
    a.e(f"v_sqrt_f32 v{vSq}, v{vSq}")
    a.e("s_nop 0")
    rbf16(a, vSq, vSq, 5)
    a.e(f"""
    v_rcp_f32 v{vR}, v{vSq}
    s_nop 0
    v_mul_f32 v{vMR}, v{vM}, v{vR}
    """)
    if FINE: a.stamp(4)
    a.e("s_waitcnt lgkmcnt(0)")
    if FINE: a.stamp(5)
    a.e("s_barrier")
    if FINE: a.stamp(6)
    T = AF
    a.e("s_waitcnt vmcnt(0)")
    for i in range(4):
        a.e(f"""
        v_lshlrev_b32 v{T}, 16, v{vXN+i}
        v_and_b32 v{T+1}, 0xffff0000, v{vXN+i}
        v_sub_f32 v{T}, v{T}, v{vM}
        v_sub_f32 v{T+1}, v{T+1}, v{vM}
        v_cvt_pk_bf16_f32 v{T+2}, v{T}, v{T+1}
        v_lshlrev_b32 v{T}, 16, v{T+2}
        v_and_b32 v{T+1}, 0xffff0000, v{T+2}
        v_mul_f32 v{T+2}, v{T}, v{vR}
        v_mul_f32 v{T+3}, v{T+1}, v{vR}
        v_fma_f32 v{T}, -v{T+2}, v{vSq}, v{T}
        v_fma_f32 v{T+1}, -v{T+3}, v{vSq}, v{T+1}
        v_fma_f32 v{T+2}, v{T}, v{vR}, v{T+2}
        v_fma_f32 v{T+3}, v{T+1}, v{vR}, v{T+3}
        v_cvt_pk_bf16_f32 v{vXN+i}, v{T+2}, v{T+3}
        """)
    a.e(f"""
    v_and_b32 v5, 15, v1
    v_lshrrev_b32 v6, 5, v1
    v_lshlrev_b32 v6, 3, v6
    v_sub_u32 v5, v5, v6
    """)
    if FINE: a.stamp(7)
    onehot_frag(a, T+4, 5, 6)
    if FINE: a.stamp(8)
    a.e("s_nop 1")
    a.e(f"v_mfma_f32_32x32x16_bf16 {vr(T+16,16)}, {vr(vXN,4)}, {vr(T+4,4)}, 0")
    a.e(f"""
    v_and_b32 v5, 15, v1
    s_lshl_b32 s36, s35, 4
    v_add_u32 v5, s36, v5
    v_lshlrev_b32 v5, 12, v5
    v_lshrrev_b32 v6, 4, v1
    v_bfe_u32 v7, v6, 1, 1
    v_and_b32 v6, 1, v6
    v_lshl_add_u32 v7, v7, 1, v6
    v_lshl_add_u32 v5, v7, 10, v5
    s_lshl_b32 s36, s34, 3
    s_add_u32 s36, s36, s3
    s_lshl_b32 s44, s36, 4
    v_cmp_eq_u32 vcc, 1, v6
    """)
    a.nop(8)
    for i in range(4):
        a.e(f"v_cvt_pk_f16_f32 v{T+i}, v{T+16+2*i}, v{T+16+2*i+1}")
        a.e(f"v_cvt_pk_f16_f32 v{T+4+i}, v{T+24+2*i}, v{T+24+2*i+1}")
        a.e(f"v_cndmask_b32 v{T+8+i}, v{T+i}, v{T+4+i}, vcc")
    a.e(f"buffer_store_dwordx4 {vr(T+8,4)}, v5, s[24:27], s44 offen")
    a.stamp(10)
    SB = XB
    a.e(f"""
    v_lshrrev_b32 v5, 5, v1
    v_lshlrev_b32 v5, 4, v5
    v_add_u32 v5, {S_OFF}, v5
    """)
    for t in range(4):
        for q in range(4):
            a.e(f"ds_read_b128 {vr(SB+16*t+4*q,4)}, v5 offset:{t*128+q*32}")
    a.e(f"""
    s_mul_i32 s45, s36, 112
    s_lshl_b32 s46, s35, 2
    s_add_u32 s45, s45, s46
    s_lshl_b32 s45, s45, 10
    v_lshlrev_b32 v6, 4, v1
    s_mov_b32 s46, {fhex(-2*1.4426950408889634*0.7978845608028654)}
    s_mov_b32 s47, {fhex(-2*1.4426950408889634*0.7978845608028654*0.044715)}
    v_mov_b32 v7, s46
    s_waitcnt lgkmcnt(0)
    """)
    W = XB + 64
    for t in range(4):
        A0 = ACC + 16*t; S0 = SB + 16*t
        for r in range(16):
            a.e(f"v_mul_f32 v{S0+r}, v{S0+r}, v{vMR}")
            a.e(f"v_fma_f32 v{A0+r}, v{A0+r}, v{vR}, -v{S0+r}")
        if EXACT_ROUND:
            for p in range(8):
                a.e(f"v_cvt_pk_bf16_f32 v{W}, v{A0+2*p}, v{A0+2*p+1}")
                a.e(f"v_lshlrev_b32 v{A0+2*p}, 16, v{W}")
                a.e(f"v_and_b32 v{A0+2*p+1}, 0xffff0000, v{W}")
        for r in range(8):
            a.e(f"v_mul_f32 v{W+r}, v{A0+r}, v{A0+r}")
        for r in range(8):
            a.e(f"v_fma_f32 v{W+r}, v{W+r}, s47, v7")
        for r in range(8):
            a.e(f"v_mul_f32 v{W+r}, v{W+r}, v{A0+r}")
        for r in range(8):
            a.e(f"v_exp_f32 v{W+r}, v{W+r}")
        for r in range(8):
            a.e(f"v_add_f32 v{W+r}, 1.0, v{W+r}")
        for r in range(8):
            a.e(f"v_rcp_f32 v{W+r}, v{W+r}")
        for r in range(8):
            a.e(f"v_mul_f32 v{W+r}, v{W+r}, v{A0+r}")
        if EXACT_ROUND:
            for p in range(4):
                a.e(f"v_cvt_pk_bf16_f32 v{W+8}, v{W+2*p}, v{W+2*p+1}")
                a.e(f"v_lshlrev_b32 v{W+2*p}, 16, v{W+8}")
                a.e(f"v_and_b32 v{W+2*p+1}, 0xffff0000, v{W+8}")
        for r in range(8):
            a.e(f"v_mul_f32 v{W+r}, v{W+r}, v{A0+8+r}")
        O = W + 12 + 4*t
        for p in range(4):
            a.e(f"v_cvt_pk_bf16_f32 v{O+p}, v{W+2*p}, v{W+2*p+1}")
        a.e(f"buffer_store_dwordx4 {vr(O,4)}, v6, s[20:23], s45 offen offset:{t*1024}")
    a.stamp(11)
    a.e("s_waitcnt vmcnt(0)")
    a.stamp(12)
    a.dump_stamps(100)
    a.label("g1_exit")
    a.e("s_endpgm")
    return dict(name="g1_kernel", grid=224, block=512, lds=115200, vgpr=256)


def gen_wd(a):
    a.label("wd_kernel")
    a.e("""
    s_cmp_ge_u32 s2, 196
    s_cbranch_scc1 wd_exit
    s_load_dwordx2 s[4:5], s[0:1], 96
    s_load_dwordx2 s[6:7], s[0:1], 120
    v_and_b32 v1, 63, v0
    v_lshrrev_b32 v2, 6, v0
    s_nop 0
    v_readfirstlane_b32 s3, v2
    s_lshl_b32 s32, s2, 2
    s_add_u32 s32, s32, s3
    """)
    a.e(f"""
    s_mul_i32 s33, s32, 9363
    s_lshr_b32 s33, s33, 20
    s_mul_i32 s34, s33, 112
    s_sub_u32 s34, s32, s34
    v_lshrrev_b32 v2, 3, v1
    s_movk_i32 s35, 896
    v_mul_lo_u32 v3, v2, s35
    v_and_b32 v4, 7, v1
    v_lshl_add_u32 v3, v4, 4, v3
    s_mul_i32 s36, s34, 14336
    s_lshl_b32 s37, s33, 7
    s_add_u32 s36, s36, s37
    s_add_u32 s37, s36, 7168
    s_lshl_b32 s38, s3, 11
    v_lshlrev_b32 v5, 4, v1
    v_add_u32 v5, s38, v5
    v_lshrrev_b32 v6, 5, v1
    v_lshlrev_b32 v6, 10, v6
    v_bfe_u32 v7, v1, 2, 2
    v_lshl_add_u32 v6, v7, 7, v6
    v_and_b32 v7, 1, v1
    v_lshl_add_u32 v6, v7, 5, v6
    v_bfe_u32 v7, v1, 4, 1
    v_lshl_add_u32 v6, v7, 4, v6
    v_bfe_u32 v7, v1, 1, 1
    v_lshl_add_u32 v6, v7, 3, v6
    v_add_u32 v6, s38, v6
    s_waitcnt lgkmcnt(0)
    """)
    a.srd(8, 4, 1605632)
    a.srd(12, 6, 1605632, WS_WD)
    a.e(f"""
    buffer_load_dwordx4 v[8:11], v3, s[8:11], s36 offen
    buffer_load_dwordx4 v[12:15], v3, s[8:11], s37 offen
    s_mul_i32 s39, s33, 224
    s_add_u32 s39, s39, s34
    s_lshl_b32 s39, s39, 10
    s_add_u32 s40, s39, {112*1024}
    v_lshlrev_b32 v7, 4, v1
    s_waitcnt vmcnt(0)
    ds_write_b128 v5, v[8:11]
    ds_write_b128 v5, v[12:15] offset:1024
    ds_read_b64_tr_b16 v[16:17], v6
    ds_read_b64_tr_b16 v[18:19], v6 offset:512
    ds_read_b64_tr_b16 v[20:21], v6 offset:64
    ds_read_b64_tr_b16 v[22:23], v6 offset:576
    s_waitcnt lgkmcnt(0)
    buffer_store_dwordx4 v[16:19], v7, s[12:15], s39 offen
    buffer_store_dwordx4 v[20:23], v7, s[12:15], s40 offen
    """)
    a.label("wd_exit")
    a.e("s_endpgm")
    return dict(name="wd_kernel", grid=196, block=256, lds=8192, vgpr=32)

def gen_g2(a, with_y=True):
    ACC = 16
    FB = 80
    DEPTH = 8
    a.label("g2_kernel")
    a.e("""
    s_cmp_ge_u32 s2, 224
    s_cbranch_scc1 g2_exit
    s_load_dwordx2 s[4:5], s[0:1], 0
    s_load_dwordx2 s[6:7], s[0:1], 120
    s_load_dwordx2 s[28:29], s[0:1], 104
    """)
    a.stamp(0)
    a.e("""
    v_and_b32 v1, 63, v0
    v_lshrrev_b32 v2, 6, v0
    s_and_b32 s32, s2, 7
    v_readfirstlane_b32 s3, v2
    s_lshr_b32 s33, s2, 3
    """)
    a.e("""
    s_lshl_b32 s34, s32, 2
    s_and_b32 s35, s33, 3
    s_add_u32 s34, s34, s35
    s_lshr_b32 s35, s33, 2
    v_lshlrev_b32 v2, 4, v1
    s_waitcnt lgkmcnt(0)
    """)
    a.srd(8, 6, 7340032, WS_H)
    a.srd(12, 6, 1605632, WS_WD)
    a.srd(16, 6, 1835008, WS_YT)
    a.srd(20, 4, 1835008)
    a.srd(24, 28, 1835008)
    a.e(f"""
    s_mul_i32 s36, s34, {2*112*1024}
    s_mul_i32 s37, s3, {28*1024}
    s_add_u32 s36, s36, s37
    s_add_u32 s38, s36, {112*1024}
    s_mul_i32 s39, s35, {2*112*1024}
    s_add_u32 s39, s39, s37
    s_add_u32 s40, s39, {112*1024}
    """)
    def loads(k):
        b = FB + (k % DEPTH) * 16
        off = (k % 4) * 1024
        a.e(f"buffer_load_dwordx4 {vr(b,4)}, v2, s[12:15], s39 offen offset:{off}")
        a.e(f"buffer_load_dwordx4 {vr(b+4,4)}, v2, s[12:15], s40 offen offset:{off}")
        a.e(f"buffer_load_dwordx4 {vr(b+8,4)}, v2, s[8:11], s36 offen offset:{off}")
        a.e(f"buffer_load_dwordx4 {vr(b+12,4)}, v2, s[8:11], s38 offen offset:{off}")
        if k % 4 == 3:
            for r in (36, 38, 39, 40):
                a.e(f"s_add_u32 s{r}, s{r}, 4096")
    a.stamp(1)
    for k in range(DEPTH):
        loads(k)
    a.stamp(2)
    for k in range(28):
        inflight = min(28, k + DEPTH) - (k + 1)
        a.e(f"s_waitcnt vmcnt({4*inflight})")
        if k % 7 == 0: a.stamp(3 + k//7)
        b = FB + (k % DEPTH) * 16
        for mt in range(2):
            for nt in range(2):
                c = "0" if k == 0 else vr(ACC+32*mt+16*nt,16)
                a.e(f"v_mfma_f32_32x32x16_bf16 {vr(ACC+32*mt+16*nt,16)}, {vr(b+4*mt,4)}, {vr(b+8+4*nt,4)}, {c}")
        if k + DEPTH < 28:
            loads(k + DEPTH)
    a.stamp(7)
    a.e("""
    s_lshl_b32 s41, s3, 12
    v_add_u32 v3, s41, v2
    """)
    a.nop(12)
    for sub in range(4):
        for q in range(4):
            a.e(f"ds_write_b128 v3, {vr(ACC+16*sub+4*q,4)} offset:{sub*16384+q*1024}")
    a.e("v_and_b32 v4, 31, v1")
    token_perm(a, 5, 4, 6, 7)
    a.e("""
    s_lshr_b32 s42, s3, 1
    s_and_b32 s43, s3, 1
    s_lshl_b32 s44, s34, 1
    s_add_u32 s44, s44, s43
    s_lshl_b32 s44, s44, 5
    s_lshl_b32 s45, s35, 1
    s_add_u32 s45, s45, s42
    s_lshl_b32 s45, s45, 5
    v_add_u32 v6, s44, v5
    s_movk_i32 s46, 896
    v_mul_lo_u32 v6, v6, s46
    v_lshrrev_b32 v7, 5, v1
    v_lshl_add_u32 v6, v7, 5, v6
    s_lshl_b32 s46, s45, 1
    """)
    X = FB
    a.e(f"buffer_load_dwordx4 {vr(X,4)}, v6, s[20:23], s46 offen")
    a.e(f"buffer_load_dwordx4 {vr(X+4,4)}, v6, s[20:23], s46 offen offset:16")
    Y = FB + 8
    if with_y:
        a.e(f"""
        v_bfe_u32 v8, v4, 2, 1
        v_lshlrev_b32 v9, 4, v8
        v_bfe_u32 v8, v4, 4, 1
        v_lshl_or_b32 v9, v8, 3, v9
        v_bfe_u32 v8, v4, 3, 1
        v_lshl_or_b32 v9, v8, 2, v9
        v_and_b32 v8, 3, v4
        v_or_b32 v9, v8, v9
        v_add_u32 v9, s45, v9
        v_lshlrev_b32 v9, 12, v9
        v_lshl_add_u32 v9, v7, 4, v9
        s_lshl_b32 s47, s44, 1
        buffer_load_dwordx4 {vr(Y,4)}, v9, s[16:19], s47 offen
        buffer_load_dwordx4 {vr(Y+4,4)}, v9, s[16:19], s47 offen offset:32
        v_lshlrev_b32 v8, 3, v7
        v_sub_u32 v8, v5, v8
        """)
        onehot_frag(a, Y+8, 8, 10)
        a.e("v_subrev_u32 v8, 16, v8")
        onehot_frag(a, Y+12, 8, 10)
    a.e("""
    s_lshl_b32 s41, s3, 14
    v_add_u32 v3, s41, v2
    s_waitcnt lgkmcnt(0)
    s_barrier
    """)
    a.stamp(8)
    R = FB + 32
    for w in range(4):
        for q in range(4):
            a.e(f"ds_read_b128 {vr(R+16*w+4*q,4)}, v3 offset:{w*4096+q*1024}")
    a.e("s_waitcnt lgkmcnt(0)")
    for r in range(16):
        a.e(f"v_add_f32 v{R+r}, v{R+r}, v{R+16+r}")
        a.e(f"v_add_f32 v{R+32+r}, v{R+32+r}, v{R+48+r}")
    for r in range(16):
        a.e(f"v_add_f32 v{R+r}, v{R+r}, v{R+32+r}")
    a.e("s_waitcnt vmcnt(0)")
    if with_y:
        a.e(f"v_mfma_f32_32x32x16_bf16 {vr(R+16,16)}, {vr(Y,4)}, {vr(Y+8,4)}, 0")
        a.e(f"v_mfma_f32_32x32x16_bf16 {vr(R+16,16)}, {vr(Y+4,4)}, {vr(Y+12,4)}, {vr(R+16,16)}")
    for p in range(8):
        a.e(f"v_cvt_pk_bf16_f32 v10, v{R+2*p}, v{R+2*p+1}")
        a.e(f"v_lshlrev_b32 v{R+2*p}, 16, v10")
        a.e(f"v_and_b32 v{R+2*p+1}, 0xffff0000, v10")
        a.e(f"v_lshlrev_b32 v{R+32+2*p}, 16, v{X+p}")
        a.e(f"v_and_b32 v{R+32+2*p+1}, 0xffff0000, v{X+p}")
    if with_y:
        for p in range(8):
            a.e(f"v_add_f32 v{R+32+2*p}, v{R+32+2*p}, v{R+16+2*p}")
            a.e(f"v_add_f32 v{R+32+2*p+1}, v{R+32+2*p+1}, v{R+16+2*p+1}")
            a.e(f"v_cvt_pk_bf16_f32 v10, v{R+32+2*p}, v{R+32+2*p+1}")
            a.e(f"v_lshlrev_b32 v{R+32+2*p}, 16, v10")
            a.e(f"v_and_b32 v{R+32+2*p+1}, 0xffff0000, v10")
    for p in range(8):
        a.e(f"v_add_f32 v{R+2*p}, v{R+2*p}, v{R+32+2*p}")
        a.e(f"v_add_f32 v{R+2*p+1}, v{R+2*p+1}, v{R+32+2*p+1}")
        a.e(f"v_cvt_pk_bf16_f32 v{R+48+p}, v{R+2*p}, v{R+2*p+1}")
    a.e(f"buffer_store_dwordx4 {vr(R+48,4)}, v6, s[24:27], s46 offen")
    a.e(f"buffer_store_dwordx4 {vr(R+52,4)}, v6, s[24:27], s46 offen offset:16")
    a.stamp(9)
    a.e("s_waitcnt vmcnt(0)")
    a.stamp(10)
    a.dump_stamps(100)
    a.label("g2_exit")
    a.e("s_endpgm")
    return dict(name="g2_kernel", grid=224, block=256, lds=65536, vgpr=FB+DEPTH*16)

def build(kernels, path):
    body = []
    infos = []
    for g in kernels:
        a = Asm()
        a.prof = PROF
        a._lab = 1000*len(infos)
        info = g(a)
        infos.append(info)
        body.append(f".globl {info['name']}\n.p2align 8\n.type {info['name']},@function\n" + a.text())
    s = ""
    for i in infos:
        s += f"; @launch kernel={i['name']} grid=({i['grid']},1,1) block=({i['block']},1,1) lds={i['lds']}\n"
    s += '.amdgcn_target "amdgcn-amd-amdhsa--gfx950"\n.text\n'
    s += "".join(body)
    s += '.section .rodata,"a"\n'
    for i in infos:
        s += kernel_desc(i['name'], i['vgpr'], accum=i.get('accum'))
    open(path, "w").write(s)

if __name__ == "__main__":
    build([gen_wd, gen_g1, lambda a: gen_g2(a, with_y=False)], OUT)
```

```python
from asmlib import *
from gen1 import *
LOG2E = 1.4426950408889634
INV2PI = 0.15915494309189535

def cmul(a, d, x, y, t):
    a.e(f"""
    v_mul_f32 v{t}, v{x+1}, v{y+1}
    v_mul_f32 v{t+1}, v{x+1}, v{y}
    v_fma_f32 v{t}, v{x}, v{y}, -v{t}
    v_fma_f32 v{d+1}, v{x}, v{y+1}, v{t+1}
    v_mov_b32 v{d}, v{t}
    """ if d in (x, y) else f"""
    v_mul_f32 v{t}, v{x+1}, v{y+1}
    v_mul_f32 v{t+1}, v{x+1}, v{y}
    v_fma_f32 v{d}, v{x}, v{y}, -v{t}
    v_fma_f32 v{d+1}, v{x}, v{y+1}, v{t+1}
    """)

def split_write(a, re, vaddr, off, t, negim=False):
    n = "-" if negim else ""
    a.e(f"""
    v_cvt_pk_bf16_f32 v{t}, v{re}, {n}v{re+1}
    v_lshlrev_b32 v{t+2}, 16, v{t}
    v_and_b32 v{t+3}, 0xffff0000, v{t}
    v_sub_f32 v{t+2}, v{re}, v{t+2}
    v_sub_f32 v{t+3}, {n}v{re+1}, v{t+3}
    v_cvt_pk_bf16_f32 v{t+1}, v{t+2}, v{t+3}
    ds_write_b64 v{vaddr}, v[{t}:{t+1}] offset:{off}
    """)

PITCH = 528
def gen_kg(a):
    a.label("kg_kernel")
    a.e("""
    s_cmp_ge_u32 s2, 448
    s_cbranch_scc1 kg_exit
    s_load_dwordx8 s[4:11], s[0:1], 8
    s_load_dwordx4 s[12:15], s[0:1], 40
    s_load_dwordx2 s[16:17], s[0:1], 56
    s_load_dwordx2 s[18:19], s[0:1], 120
    """)
    a.stamp(0)
    a.e("""
    v_and_b32 v1, 63, v0
    v_lshrrev_b32 v2, 6, v0
    s_lshl_b32 s33, s2, 9
    v_readfirstlane_b32 s3, v2
    v_lshlrev_b32 v2, 1, v0
    s_lshl_b32 s34, s2, 1
    v_mov_b32 v3, s34
    s_waitcnt lgkmcnt(0)
    """)
    ptrs = [4, 6, 8, 10, 12, 14]
    for i, p in enumerate(ptrs):
        a.srd(36 + 4*i, p, 229376)
    a.srd(20, 16, 896)
    a.srd(24, 18, 1835008, WS_K)
    a.srd(28, 18, 1792, WS_KS)
    IN = 8
    for i in range(6):
        a.e(f"buffer_load_ushort v{IN+i}, v2, s[{36+4*i}:{39+4*i}], s33 offen")
    a.e(f"buffer_load_ushort v{IN+6}, v3, s[20:23], 0 offen")
    a.e(f"""
    s_mul_i32 s35, s3, {16*PITCH}
    v_lshlrev_b32 v4, 3, v1
    v_add_u32 v4, s35, v4
    v_and_b32 v5, 15, v1
    s_movk_i32 s32, {PITCH}
    v_mul_lo_u32 v5, v5, s32
    v_bfe_u32 v6, v1, 4, 1
    v_lshl_add_u32 v5, v6, 8, v5
    v_lshrrev_b32 v6, 5, v1
    v_lshl_add_u32 v5, v6, 7, v5
    v_add_u32 v5, s35, v5
    s_waitcnt vmcnt(0)
    """)
    a.stamp(1)
    for i in range(7):
        a.e(f"v_lshlrev_b32 v{IN+i}, 16, v{IN+i}")
    are, aim, bre, bim, cre, cim, ldt = range(IN, IN+7)
    T = 16
    Lhi = 1.4426879882812500
    import struct
    Lhi = struct.unpack("<f", struct.pack("<I", 0x3FB8AA00))[0]
    Llo = LOG2E - Lhi
    a.e(f"""
    v_mul_f32 v{T}, {fhex(Lhi)}, v{ldt}
    v_mul_f32 v{T+1}, {fhex(Llo*0.6931471805599453)}, v{ldt}
    v_exp_f32 v{T}, v{T}
    s_nop 0
    v_fma_f32 v{T}, v{T}, v{T+1}, v{T}
    """)
    rbf16(a, ldt, T, T+1)
    dt = ldt
    a.e(f"""
    v_mul_f32 v{are}, v{are}, v{dt}
    v_mul_f32 v{aim}, v{aim}, v{dt}
    v_mul_f32 v{bre}, v{bre}, v{dt}
    v_mul_f32 v{bim}, v{bim}, v{dt}
    v_mul_f32 v{are}, {fhex(LOG2E)}, v{are}
    v_mul_f32 v{aim}, {fhex(INV2PI)}, v{aim}
    """)
    Z = 24
    Z8 = 38
    Wp = 40
    WC = 46
    Q = 48
    P = 50
    def zpow(d, p):
        if p == 1:
            a.e(f"v_exp_f32 v{T}, v{are}")
            a.e(f"v_fract_f32 v{T+1}, v{aim}")
        else:
            a.e(f"v_mul_f32 v{T}, {fhex(float(p))}, v{are}")
            a.e(f"v_mul_f32 v{T+1}, {fhex(float(p))}, v{aim}")
            a.e(f"v_exp_f32 v{T}, v{T}")
            a.e(f"v_fract_f32 v{T+1}, v{T+1}")
        a.e(f"""
        s_nop 0
        v_cos_f32 v{T+2}, v{T+1}
        v_sin_f32 v{T+3}, v{T+1}
        s_nop 0
        v_mul_f32 v{d}, v{T}, v{T+2}
        v_mul_f32 v{d+1}, v{T}, v{T+3}
        """)
    zpow(Z, 1); zpow(Z8, 8); zpow(Wp, 128)
    cmul(a, Q, cre, bre, T)
    BQ = 64
    AFR = 128
    ACC = 160
    TT = 52
    for j in range(16):
        split_write(a, Q, 4, j*PITCH, TT + 4*(j & 1), negim=True)
        if j < 15:
            cmul(a, Q, Q, Z8, T)
    for ks in range(8):
        a.e(f"ds_read_b128 {vr(BQ+4*ks,4)}, v5 offset:{16*ks}")
    z = lambda e: Z + 2*(e-1)
    cmul(a, z(2), z(1), z(1), T); cmul(a, z(3), z(2), z(1), T); cmul(a, z(4), z(2), z(2), T)
    cmul(a, z(5), z(4), z(1), T); cmul(a, z(6), z(3), z(3), T); cmul(a, z(7), z(6), z(1), T)
    w = lambda k: Wp + 2*(k-1)
    cmul(a, w(2), w(1), w(1), T); cmul(a, w(3), w(2), w(1), T)
    ONE = 60
    a.e(f"v_mov_b32 v{ONE}, 1.0\nv_mov_b32 v{ONE+1}, 0")
    a.e("s_waitcnt lgkmcnt(0)")
    for ks in range(8):
        for i in range(2):
            a.e(f"v_mov_b32 v{BQ+32+4*ks+2*i}, v{BQ+4*ks+2*i+1}")
            a.e(f"v_mov_b32 v{BQ+32+4*ks+2*i+1}, v{BQ+4*ks+2*i}")
    cnt = [0]
    def put(row, reg):
        split_write(a, reg, 4, row*PITCH, TT + 4*(cnt[0] & 1)); cnt[0] += 1
    def mm(tile):
        for ks in range(8):
            a.e(f"ds_read_b128 {vr(AFR+4*ks,4)}, v5 offset:{16*ks}")
        for ks in range(8):
            a.e(f"s_waitcnt lgkmcnt({7-ks})")
            c = "0" if ks == 0 else vr(ACC+4*tile,4)
            a.e(f"v_mfma_f32_16x16x32_bf16 {vr(ACC+4*tile,4)}, {vr(AFR+4*ks,4)}, {vr(BQ+4*ks,4)}, {c}")
            a.e(f"v_mfma_f32_16x16x32_bf16 {vr(ACC+4*tile,4)}, {vr(AFR+4*ks,4)}, {vr(BQ+32+4*ks,4)}, {vr(ACC+4*tile,4)}")
    for g in range(4):
        for r in range(4):
            if g == 0:
                put(4*g+r, ONE if r == 0 else w(r))
            elif r == 0:
                put(4*g+r, z(2*g))
            else:
                cmul(a, P, z(2*g), w(r), T); put(4*g+r, P)
    mm(0)
    cmul(a, WC, w(2), w(2), T)
    for k in range(4, 8):
        put(k-4, WC)
        cmul(a, P, WC, z(4), T); put(4 + k-4, P)
        cmul(a, WC, WC, w(1), T)
    for k in range(8, 16):
        put(8 + k-8, WC)
        cmul(a, WC, WC, w(1), T)
    mm(1)
    a.e(f"v_mov_b32 v{T+4}, 0\nv_mov_b32 v{T+5}, 0")
    for g in range(4):
        put(4*g, z(2*g+1))
        cmul(a, P, z(2*g+1), w(1), T); put(4*g+1, P)
        if g == 0:
            put(2, WC)
        else:
            a.e(f"ds_write_b64 v4, v[{T+4}:{T+5}] offset:{(4*g+2)*PITCH}")
        a.e(f"ds_write_b64 v4, v[{T+4}:{T+5}] offset:{(4*g+3)*PITCH}")
    mm(2)
    a.stamp(2)
    PART = 4*16*PITCH
    KV = PART + 4*3*1024
    MX = KV + 8960
    a.e(f"""
    v_lshlrev_b32 v6, 4, v1
    s_mul_i32 s35, s3, 3072
    s_add_u32 s35, s35, {PART}
    v_add_u32 v7, s35, v6
    """)
    a.nop(8)
    for t in range(3):
        a.e(f"ds_write_b128 v7, {vr(ACC+4*t,4)} offset:{t*1024}")
    a.e(f"""
    v_and_b32 v8, 15, v1
    v_lshlrev_b32 v8, 3, v8
    v_lshrrev_b32 v9, 4, v1
    v_lshlrev_b32 v10, 1, v9
    v_add_u32 v11, 1, v10
    v_lshlrev_b32 v12, 9, v9
    v_cmp_gt_u32 vcc, 2, v9
    v_lshlrev_b32 v13, 2, v9
    v_add_u32 v13, 512, v13
    v_cndmask_b32 v12, v12, v13, vcc
    s_cmp_eq_u32 s3, 1
    s_cselect_b64 vcc, -1, 0
    v_cndmask_b32 v10, v10, v12, vcc
    s_cmp_eq_u32 s3, 2
    s_cselect_b64 vcc, -1, 0
    v_cndmask_b32 v10, v10, v11, vcc
    v_add_u32 v10, v10, v8
    v_lshlrev_b32 v10, 2, v10
    v_add_u32 v10, {KV}, v10
    v_add_u32 v11, 2048, v8
    v_lshlrev_b32 v11, 2, v11
    v_add_u32 v11, {KV}, v11
    v_add_u32 v12, 1024, v10
    v_cndmask_b32 v11, v12, v11, vcc
    s_lshl_b32 s35, s3, 10
    s_add_u32 s35, s35, {PART}
    v_add_u32 v7, s35, v6
    s_waitcnt lgkmcnt(0)
    s_barrier
    """)
    lab = a.newlabel("kg_skip")
    a.e(f"""
    v_mov_b32 v20, 0
    s_cmp_eq_u32 s3, 3
    s_cbranch_scc1 {lab}
    """)
    for wv in range(4):
        a.e(f"ds_read_b128 {vr(64+4*wv,4)}, v7 offset:{wv*3072}")
    a.e("s_waitcnt lgkmcnt(0)")
    for r in range(4):
        a.e(f"v_add_f32 v{64+r}, v{64+r}, v{68+r}")
        a.e(f"v_add_f32 v{72+r}, v{72+r}, v{76+r}")
        a.e(f"v_add_f32 v{64+r}, v{64+r}, v{72+r}")
    a.e(f"""
    ds_write_b32 v10, v64
    ds_write_b32 v10, v65 offset:512
    ds_write_b32 v10, v67 offset:1536
    v_max3_f32 v20, |v64|, |v65|, |v66|
    v_max_f32 v20, |v67|, v20
    s_cmp_eq_u32 s3, 2
    s_cselect_b32 s35, 16, 64
    v_cmp_gt_u32 vcc, s35, v1
    s_and_saveexec_b64 s[60:61], vcc
    ds_write_b32 v11, v66
    s_mov_b64 exec, s[60:61]
    """)
    a.label(lab)
    a.e(f"""
    s_nop 1
    v_max_f32_dpp v20, v20, v20 quad_perm:[1,0,3,2] row_mask:0xf bank_mask:0xf
    s_nop 1
    v_max_f32_dpp v20, v20, v20 quad_perm:[2,3,0,1] row_mask:0xf bank_mask:0xf
    s_nop 1
    v_max_f32_dpp v20, v20, v20 row_half_mirror row_mask:0xf bank_mask:0xf
    s_nop 1
    v_max_f32_dpp v20, v20, v20 row_mirror row_mask:0xf bank_mask:0xf
    v_lshrrev_b32 v21, 4, v0
    v_lshlrev_b32 v21, 2, v21
    v_add_u32 v21, {MX}, v21
    ds_write_b32 v21, v20
    """)
    a.e("v_lshlrev_b32 v22, 3, v0")
    for i in range(8):
        a.e(f"v_add_u32 v{24+i}, {i}, v22")
        a.e(f"v_cvt_f32_u32 v{24+i}, v{24+i}")
    for i in range(4):
        a.e(f"v_cvt_pk_bf16_f32 v32, v{24+2*i}, v{25+2*i}")
        a.e(f"v_lshlrev_b32 v{24+2*i}, 16, v32")
        a.e(f"v_and_b32 v{25+2*i}, 0xffff0000, v32")
    for i in range(8):
        a.e(f"v_cvt_u32_f32 v{24+i}, v{24+i}")
        a.e(f"v_lshlrev_b32 v{24+i}, 2, v{24+i}")
    a.e(f"""
    v_mov_b32 v21, {MX}
    s_waitcnt lgkmcnt(0)
    s_barrier
    ds_read_b128 v[40:43], v21
    ds_read_b128 v[44:47], v21 offset:16
    ds_read_b128 v[48:51], v21 offset:32
    """)
    for i in range(8):
        a.e(f"ds_read_b32 v{32+i}, v{24+i} offset:{KV}")
    a.e(f"""
    s_waitcnt lgkmcnt(8)
    v_max3_f32 v40, v40, v41, v42
    v_max3_f32 v40, v40, v43, v44
    v_max3_f32 v40, v40, v45, v46
    v_max3_f32 v40, v40, v47, v48
    v_max3_f32 v40, v40, v49, v50
    v_max_f32 v40, v40, v51
    v_lshrrev_b32 v40, 23, v40
    v_max_u32 v40, 16, v40
    v_min_u32 v40, 254, v40
    v_sub_u32 v41, 268, v40
    v_lshlrev_b32 v41, 23, v41
    v_subrev_u32 v42, 14, v40
    v_lshlrev_b32 v42, 23, v42
    s_waitcnt lgkmcnt(0)
    """)
    for i in range(8):
        a.e(f"v_mul_f32 v{32+i}, v{32+i}, v41")
    for i in range(4):
        a.e(f"v_cvt_pk_f16_f32 v{44+i}, v{32+2*i}, v{33+2*i}")
    a.e(f"""
    v_lshlrev_b32 v22, 4, v0
    s_lshl_b32 s35, s2, 12
    buffer_store_dwordx4 v[44:47], v22, s[24:27], s35 offen
    s_lshl_b32 s35, s2, 2
    v_mov_b32 v23, s35
    v_cmp_eq_u32 vcc, 0, v0
    s_and_saveexec_b64 s[60:61], vcc
    s_cbranch_execz kg_exit2
    buffer_store_dword v42, v23, s[28:31], 0 offen
    """)
    a.label("kg_exit2")
    a.e("s_mov_b64 exec, s[60:61]")
    a.stamp(3)
    a.dump_stamps(100)
    a.label("kg_exit")
    a.e("s_endpgm")
    return dict(name="kg_kernel", grid=448, block=256, lds=MX+64, vgpr=176)


UP = 1216
KREG = 4352
CH_LDS = KREG + 4*UP
def gen_cv(a):
    SP = 2*CH_LDS
    a.label("cv_kernel")
    a.e("""
    s_cmp_ge_u32 s2, 224
    s_cbranch_scc1 cv_exit
    s_load_dwordx2 s[4:5], s[0:1], 64
    s_load_dwordx2 s[6:7], s[0:1], 120
    """)
    a.stamp(0)
    a.e(f"""
    v_and_b32 v1, 63, v0
    v_lshrrev_b32 v2, 6, v0
    v_and_b32 v3, 127, v0
    v_readfirstlane_b32 s3, v2
    s_lshr_b32 s32, s3, 1
    s_and_b32 s33, s3, 1
    s_lshl_b32 s34, s2, 1
    s_add_u32 s34, s34, s32
    s_lshl_b32 s35, s34, 12
    s_mul_i32 s36, s32, {CH_LDS}
    v_lshlrev_b32 v4, 4, v3
    s_waitcnt lgkmcnt(0)
    """)
    a.srd(8, 6, 1835008, WS_K)
    a.srd(12, 6, 1835008, WS_UT)
    a.srd(16, 6, 1835008, WS_YT)
    a.srd(20, 6, 1792, WS_KS)
    a.srd(24, 4, 896)
    a.e(f"""
    buffer_load_dwordx4 v[8:11], v4, s[8:11], s35 offen
    buffer_load_dwordx4 v[12:15], v4, s[8:11], s35 offen offset:2048
    buffer_load_dwordx4 v[16:19], v4, s[12:15], s35 offen
    buffer_load_dwordx4 v[20:23], v4, s[12:15], s35 offen offset:2048
    s_lshl_b32 s37, s34, 2
    v_mov_b32 v5, s37
    s_lshl_b32 s37, s34, 1
    v_mov_b32 v6, s37
    buffer_load_dword v252, v5, s[20:23], 0 offen
    buffer_load_ushort v253, v6, s[24:27], 0 offen
    v_mov_b32 v24, 0
    v_mov_b32 v25, 0
    v_mov_b32 v26, 0
    v_mov_b32 v27, 0
    """)
    a.e(f"""
    v_subrev_u32 v28, 16, v3
    v_mul_u32_u24 v29, 43691, v28
    v_lshrrev_b32 v29, 19, v29
    v_mul_u32_u24 v30, 12, v29
    v_sub_u32 v30, v28, v30
    v_mul_u32_u24 v29, {UP}, v29
    v_lshlrev_b32 v31, 4, v30
    v_add_u32 v29, v29, v31
    v_add_u32 v31, 1024, v29
    v_cmp_gt_u32 vcc, 8, v30
    s_nop 1
    v_cndmask_b32 v29, v31, v29, vcc
    v_add_u32 v29, {KREG}, v29
    v_lshlrev_b32 v31, 4, v3
    v_add_u32 v30, 4096, v31
    v_cmp_gt_u32 vcc, 8, v3
    s_nop 1
    v_cndmask_b32 v31, v30, v31, vcc
    v_cmp_gt_u32 vcc, 16, v3
    s_nop 1
    v_cndmask_b32 v29, v29, v31, vcc
    v_add_u32 v29, s36, v29
    v_cmp_gt_u32 vcc, 64, v3
    s_and_saveexec_b64 s[40:41], vcc
    ds_write_b128 v29, v[24:27]
    s_mov_b64 exec, s[40:41]
    """)
    a.e(f"""
    v_add_u32 v28, s36, v4
    v_lshrrev_b32 v29, 6, v3
    v_mul_u32_u24 v29, {UP}, v29
    v_and_b32 v30, 63, v3
    v_lshl_add_u32 v29, v30, 4, v29
    v_add_u32 v29, s36, v29
    s_waitcnt vmcnt(2)
    ds_write_b128 v28, v[8:11] offset:128
    ds_write_b128 v28, v[12:15] offset:{128+2048}
    ds_write_b128 v29, v[16:19] offset:{KREG+128}
    ds_write_b128 v29, v[20:23] offset:{KREG+128+2*UP}
    """)
    a.e(f"""
    v_bfe_u32 v8, v1, 4, 1
    v_lshlrev_b32 v7, 5, v8
    v_and_b32 v8, 3, v1
    v_lshl_add_u32 v7, v8, 3, v7
    v_lshrrev_b32 v8, 5, v1
    v_lshlrev_b32 v9, 6, v8
    v_sub_u32 v7, v7, v9
    v_bfe_u32 v9, v1, 2, 2
    v_lshlrev_b32 v9, 3, v9
    v_sub_u32 v7, v7, v9
    v_add_u32 v7, 96, v7
    v_add_u32 v7, s36, v7
    v_and_b32 v9, 3, v1
    v_mul_u32_u24 v9, {UP}, v9
    v_bfe_u32 v10, v1, 2, 3
    v_add_u32 v10, v10, v8
    v_lshl_add_u32 v9, v10, 4, v9
    v_add_u32 v9, s36, v9
    v_add_u32 v9, {KREG}, v9
    v_and_b32 v10, 3, v1
    v_mul_u32_u24 v10, {UP}, v10
    v_lshrrev_b32 v11, 2, v1
    v_lshl_add_u32 v10, v11, 1, v10
    v_add_u32 v10, s36, v10
    v_add_u32 v10, {KREG+128}, v10
    s_waitcnt lgkmcnt(0)
    s_barrier
    """)
    a.stamp(1)
    UB = 16
    ACC = 148
    TB = 212
    NTB = 4
    labB = a.newlabel("cv_B"); labE = a.newlabel("cv_E")
    a.e(f"s_cmp_eq_u32 s33, 1\ns_cbranch_scc1 {labB}")
    def body(taus):
        tmax = max(taus)
        ni = 4*tmax + 5
        def tread(i):
            b = TB + 4*(i % NTB)
            a.e(f"ds_read_b64_tr_b16 {vr(b,2)}, v7 offset:{128*i+32}")
            a.e(f"ds_read_b64_tr_b16 {vr(b+2,2)}, v7 offset:{128*i}")
        for beta in range(4*tmax, -5, -1):
            a.e(f"ds_read_b128 {vr(UB+4*(beta+4),4)}, v9 offset:{32*(beta+4)}")
        for i in range(NTB-1):
            tread(i)
        a.e("s_waitcnt lgkmcnt(0)")
        for i in range(ni):
            if i + NTB - 1 < ni:
                tread(i + NTB - 1)
            rem = min(ni, i + NTB) - (i + 1)
            a.e(f"s_waitcnt lgkmcnt({2*rem})")
            for k, tau in enumerate(taus):
                if i <= 4*tau + 4:
                    c = "0" if i == 0 else vr(ACC+16*k,16)
                    a.e(f"v_mfma_f32_32x32x16_f16 {vr(ACC+16*k,16)}, {vr(UB+4*(4*tau-i+4),4)}, {vr(TB+4*(i%NTB),4)}, {c}")
        a.stamp(2)
        a.nop(16)
        E = UB
        for k, tau in enumerate(taus):
            R = ACC + 16*k + 12
            a.e(f"v_mov_b32 v{E+4*k}, v{R+3}")
            a.e(f"v_add_f32_dpp v{E+4*k+1}, v{R+3}, v{R+2} wave_shr:1 row_mask:0xf bank_mask:0xf bound_ctrl:0")
        for k, tau in enumerate(taus):
            R = ACC + 16*k + 12
            a.e(f"v_add_f32_dpp v{E+4*k+2}, v{E+4*k+1}, v{R+1} wave_shr:1 row_mask:0xf bank_mask:0xf bound_ctrl:0")
        a.e(f"""
        s_lshl_b32 s38, s32, 7
        s_add_u32 s38, s38, {SP}
        v_mov_b32 v11, s38
        s_mov_b32 s42, 0
        s_mov_b32 s43, 0x80000000
        s_mov_b64 exec, s[42:43]
        """)
        for k, tau in enumerate(taus):
            a.e(f"ds_write_b128 v11, {vr(E+4*k,4)} offset:{16*tau}")
        a.e("s_mov_b64 exec, -1")
        XN = UB + 16
        for k, tau in enumerate(taus):
            for j in range(4):
                a.e(f"ds_read_u16 v{XN+4*k+j}, v10 offset:{2*(64*tau+16*j)}")
        a.e("s_waitcnt lgkmcnt(0)\ns_barrier")
        IM = UB + 32
        for k, tau in enumerate(taus):
            if tau > 0:
                a.e(f"ds_read_b128 {vr(IM+4*k,4)}, v11 offset:{16*(tau-1)}")
            else:
                for q in range(3): a.e(f"v_mov_b32 v{IM+4*k+q}, 0")
        a.e(f"""
        v_cmp_eq_u32 vcc, 63, v1
        v_lshlrev_b32 v12, 1, v1
        s_waitcnt vmcnt(0) lgkmcnt(0)
        v_lshlrev_b32 v253, 16, v253
        """)
        TT = UB + 48
        for k, tau in enumerate(taus):
            for j in range(4):
                R = ACC + 16*k + 4*j
                if j == 0:
                    p3, p2, p1 = IM+4*k, IM+4*k+1, IM+4*k+2
                else:
                    p3, p2, p1 = R-4+3, R-4+2, R-4+1
                a.e(f"v_cndmask_b32 v{TT}, v{R+3}, v{p3}, vcc")
                a.e("s_nop 1")
                a.e(f"v_add_f32_dpp v{R+2}, v{TT}, v{R+2} wave_ror:1 row_mask:0xf bank_mask:0xf")
                a.e(f"v_cndmask_b32 v{TT+1}, v{R+2}, v{p2}, vcc")
                a.e("s_nop 1")
                a.e(f"v_add_f32_dpp v{R+1}, v{TT+1}, v{R+1} wave_ror:1 row_mask:0xf bank_mask:0xf")
                a.e(f"v_cndmask_b32 v{TT+2}, v{R+1}, v{p1}, vcc")
                a.e("s_nop 1")
                a.e(f"v_add_f32_dpp v{R}, v{TT+2}, v{R} wave_ror:1 row_mask:0xf bank_mask:0xf")
                x = XN + 4*k + j
                a.e(f"""
                v_mul_f32 v{R}, v{R}, v252
                v_cvt_f32_f16 v{x}, v{x}
                v_mul_f32 v{x}, v{x}, v253
                v_cvt_pk_bf16_f32 v{TT+3}, v{R}, v{x}
                v_lshlrev_b32 v{R}, 16, v{TT+3}
                v_and_b32 v{x}, 0xffff0000, v{TT+3}
                v_add_f32 v{R}, v{R}, v{x}
                v_cvt_pk_bf16_f32 v{x}, v{R}, v{R}
                buffer_store_short v{x}, v12, s[16:19], s35 offen offset:{2*(256*tau+64*j)}
                """)
    body([7, 4, 3, 0])
    a.e(f"s_branch {labE}")
    a.label(labB)
    body([6, 5, 2, 1])
    a.label(labE)
    a.stamp(3)
    a.dump_stamps(100)
    a.label("cv_exit")
    a.e("s_endpgm")
    return dict(name="cv_kernel", grid=224, block=256, lds=SP+256, vgpr=256)

if __name__ == "__main__":
    build([gen_wd, gen_g1, gen_kg, gen_cv, gen_g2], OUT)
```

```python
from gen_kc import *
def mk_empty(i):
    def g(a):
        a.label(f"em{i}_kernel")
        a.e("s_endpgm")
        return dict(name=f"em{i}_kernel", grid=256, block=256, lds=0, vgpr=32)
    return g
build([gen_wd, gen_g1, gen_kg, gen_cv, gen_g2], "va.s")
build([gen_wd, gen_g1, gen_kg, gen_cv, gen_g2, mk_empty(0), mk_empty(1), mk_empty(2), mk_empty(3)], "vb.s")
```
